```python
import torch

def _softmax(x, axis=-1):
    return torch.softmax(x, dim=axis)
def _gelu(x):
    return torch.nn.functional.gelu(x, approximate="tanh")
def _silu(x):
    return torch.nn.functional.silu(x)
def _sigmoid(x):
    return torch.sigmoid(x)
def _layernorm(x, axis=-1, eps=1e-5):
    m = x.mean(dim=axis, keepdim=True)
    v = x.var(dim=axis, keepdim=True, unbiased=False)
    return (x - m) / torch.sqrt(v + eps)
def _scatter_add(tgt, idx, src, axis=0):
    return tgt.clone().index_add_(axis, idx, src)
def _segment_sum(src, seg, n):
    out = torch.zeros((n,) + src.shape[1:], dtype=src.dtype)
    return out.index_add_(0, seg, src)
def _pad(x, pw):
    flat = tuple(v for pair in reversed(pw) for v in pair)
    return torch.nn.functional.pad(x, flat)

kernel_name = 'interleave_layers__softmax_full_mha__sliding_local_dilated__prompt'

def setup_inputs():

    _w = (lambda a: (lambda t: t.to(torch.bfloat16) if t.is_floating_point() else t)(torch.as_tensor(a)))
    def _A_setup():
        B, S, D = 1, 2048, 640
        return {
            "x": _w((lambda *s: torch.randn(*s, dtype=torch.bfloat16) * 0.05)(B, S, D)),
            "wqkv": _w((lambda *s: torch.randn(*s, dtype=torch.bfloat16) * 0.05)(D, 3 * D)),
            "wo": _w((lambda *s: torch.randn(*s, dtype=torch.bfloat16) * 0.05)(D, D)),
        }
    _A_in = _A_setup()

    def _B_setup():
        B, S, D = 1, 2048, 640
        return {
            "x": _w((lambda *s: torch.randn(*s, dtype=torch.bfloat16) * 0.05)(B, S, D)),
            "wqkv": _w((lambda *s: torch.randn(*s, dtype=torch.bfloat16) * 0.05)(D, 3 * D)),
            "wo": _w((lambda *s: torch.randn(*s, dtype=torch.bfloat16) * 0.05)(D, D)),
        }
    _B_in = _B_setup()

    return {
        "A_x": _A_in["x"],
        "A_wqkv": _A_in["wqkv"],
        "A_wo": _A_in["wo"],
        "B_x": _B_in["x"],
        "B_wqkv": _B_in["wqkv"],
        "B_wo": _B_in["wo"],
    }

def reference(A_x, A_wqkv, A_wo, B_x, B_wqkv, B_wo):
    def _A_ref(x, wqkv, wo):
        B, S, D = x.shape
        H = 32; Dh = D // H
        qkv = (lambda x, *d: x.permute(*d))((x @ wqkv).reshape(B, S, 3, H, Dh), 2, 0, 3, 1, 4)
        q, k, v = qkv[0], qkv[1], qkv[2]
        scale = Dh ** -0.5
        scores = torch.einsum("bhqd,bhkd->bhqk", q, k) * scale
        p = _softmax(scores, axis=-1)
        o = torch.einsum("bhqk,bhkd->bhqd", p, v)
        return (lambda x, *d: x.permute(*d))(o, 0, 2, 1, 3).reshape(B, S, D) @ wo

    def _B_ref(x, wqkv, wo):
        B, S, D = x.shape
        H = 32; Dh = D // H
        W, dil = 8, 2
        qkv = (lambda x, *d: x.permute(*d))((x @ wqkv).reshape(B, S, 3, H, Dh), 2, 0, 3, 1, 4)
        q, k, v = qkv[0], qkv[1], qkv[2]
        scale = Dh ** -0.5
        pos = torch.arange(S)
        off = torch.arange(W) * dil
        idx = pos[:, None] - off[None, :]
        mask = idx >= 0
        idx_c = torch.where(mask, idx, 0).reshape(-1)
        kg = k[:, :, idx_c, :].reshape(B, H, S, W, Dh)
        vg = v[:, :, idx_c, :].reshape(B, H, S, W, Dh)
        logits = torch.einsum("bhsd,bhswd->bhsw", q, kg) * scale
        logits = torch.where(mask[None, None, :, :], logits, -1e9)
        attn = _softmax(logits, axis=-1)
        o = torch.einsum("bhsw,bhswd->bhsd", attn, vg)
        return (lambda x, *d: x.permute(*d))(o, 0, 2, 1, 3).reshape(B, S, D) @ wo

    x = A_x
    x = x + _A_ref(_layernorm(x, axis=-1), A_wqkv, A_wo)
    x = x + _B_ref(_layernorm(x, axis=-1), B_wqkv, B_wo)
    x = x + _A_ref(_layernorm(x, axis=-1), A_wqkv, A_wo)
    x = x + _B_ref(_layernorm(x, axis=-1), B_wqkv, B_wo)
    return x
```

```python
import struct

class A:
    def __init__(s):
        s.l = []
    def __call__(s, x):
        for line in x.split("\n"):
            line = line.strip()
            if line:
                s.l.append("    " + line)
    def lab(s, x):
        s.l.append(x + ":")
    def raw(s, x):
        s.l.append(x)
    def c(s, x):
        s.l.append("    ; " + x)
    def text(s):
        return "\n".join(s.l) + "\n"

def v(i, n=1):
    return f"v{i}" if n == 1 else f"v[{i}:{i+n-1}]"

def sg(i, n=1):
    return f"s{i}" if n == 1 else f"s[{i}:{i+n-1}]"

def f32(x):
    return "0x%08x" % struct.unpack("<I", struct.pack("<f", x))[0]

class Regs:
    def __init__(s, start=1):
        s.n = start
    def get(s, n=1, align=1):
        if n > 1 and align == 1:
            align = 2
        s.n = (s.n + align - 1) // align * align
        r = s.n
        s.n += n
        return r

def interleave(main, fillers, per=None):
    out = []
    n = len(main)
    k = len(fillers)
    j = 0
    for i, m in enumerate(main):
        out.append(m)
        tgt = (k * (i + 1) + n - 1) // n
        while j < tgt:
            out.append(fillers[j]); j += 1
    out += fillers[j:]
    return out

def kdesc(name, vgpr, sgpr=96):
    vg = (vgpr + 7) // 8 * 8
    return f""".p2align 6
.amdhsa_kernel {name}
  .amdhsa_next_free_vgpr {vg}
  .amdhsa_next_free_sgpr {sgpr}
  .amdhsa_accum_offset {vg}
  .amdhsa_group_segment_fixed_size 0
  .amdhsa_kernarg_size 72
  .amdhsa_user_sgpr_count 2
  .amdhsa_user_sgpr_kernarg_segment_ptr 1
  .amdhsa_system_sgpr_workgroup_id_x 1
.end_amdhsa_kernel
"""
```

```python
import sys, math
from asmlib import *

NAME = "interleave_layers__softmax_full_mha__sliding_local_dilated__prompt"
S, D, H, DH = 2048, 640, 32, 20
XB = S * D * 2
WQKV_B = D * 3 * D * 2
WO_B = D * D * 2
HEADREC = 64 * 2560
QI_OFF = 0
KVI_REL = 16 * HEADREC
QKV_BYTES = KVI_REL + 32 * HEADREC
O_OFF = QKV_BYTES
X1_OFF = O_OFF + XB
X2_OFF = X1_OFF + XB
X3_OFF = X2_OFF + XB
QSCALE = (DH ** -0.5) * math.log2(math.e)
ONES_BF16 = 0x3F803F80
KA_X, KA_WQKV_A, KA_WO_A, KA_WQKV_B, KA_WO_B, KA_OUT, KA_DBG, KA_WS = 0, 8, 16, 32, 40, 48, 56, 64

def srd(a, r, slot, off, nbytes, tmp=None):
    a(f"s_load_dwordx2 s[{r}:{r+1}], s[0:1], {slot}")

def srd_fin(a, r, off, nbytes):
    if off:
        a(f"s_add_u32 s{r}, s{r}, {off}")
        a(f"s_addc_u32 s{r+1}, s{r+1}, 0")
    a(f"s_mov_b32 s{r+2}, {nbytes}")
    a(f"s_mov_b32 s{r+3}, 0x20000")

def entry(a, name, nwg, srds, body):
    a.raw(f".globl {name}")
    a.raw(".p2align 8")
    a.raw(f".type {name},@function")
    a.lab(name)
    a(f"s_cmp_ge_u32 s2, {nwg}")
    a(f"s_cbranch_scc1 L_{name}_exit")
    for r, slot, off, nb in srds:
        srd(a, r, slot, off, nb)
    a("s_waitcnt lgkmcnt(0)")
    for r, slot, off, nb in srds:
        srd_fin(a, r, off, nb)
    a(f"s_branch {body}")
    a.lab(f"L_{name}_exit")
    a("s_endpgm")

G1_W_OFF = 16384
G1_H_OFF = 32768
def g1_slot(B): return 34816 if B else 32768
def g1_stat(B): return 4 * g1_slot(B)
def g1_lds(B): return g1_stat(B) + 144 * 8 + 128 * 4
BROW = 368

def gemm1(a, B):
    P = "g1b" if B else "g1a"
    SLOT = g1_slot(B); STAT = g1_stat(B); CS = STAT + 144 * 8
    NL = 9 if B else 8
    a.raw(".p2align 6")
    a.lab(f"L_{P}_body")
    a("""v_lshrrev_b32 v1, 6, v0
         s_and_b32 s28, s2, 7
         s_lshr_b32 s29, s2, 3
         v_readfirstlane_b32 s22, v1
         v_and_b32 v0, 63, v0
         s_lshr_b32 s20, s28, 1
         s_lshl_b32 s20, s20, 2
         s_and_b32 s30, s29, 3
         s_add_u32 s20, s20, s30
         s_and_b32 s21, s28, 1
         s_lshl_b32 s21, s21, 3
         s_lshr_b32 s30, s29, 2
         s_add_u32 s21, s21, s30""")
    a("s_cmp_ge_u32 s22, 4")
    a(f"s_cbranch_scc1 L_{P}_loader")
    for w in range(1, 4):
        a(f"s_cmp_eq_u32 s22, {w}")
        a(f"s_cbranch_scc1 L_{P}_w{w}")
    vmax = 0
    for w in range(4):
        a.lab(f"L_{P}_w{w}")
        vmax = max(vmax, gemm1_compute(a, B, P, w, SLOT, STAT, CS))
    a.lab(f"L_{P}_loader")
    a("s_sub_u32 s22, s22, 4")
    a(f"""s_lshl_b32 s28, s20, 7
          s_lshl_b32 s29, s22, 5
          s_add_u32 s28, s28, s29
          v_lshrrev_b32 v1, 3, v0
          v_add_u32 v1, s28, v1
          v_mul_u32_u24 v1, 1280, v1
          v_and_b32 v2, 7, v0
          v_lshrrev_b32 v3, 4, v0
          v_xor_b32 v2, v2, v3
          v_lshlrev_b32 v2, 4, v2
          v_xor_b32 v4, 64, v2
          v_add_u32 v10, v1, v2
          v_add_u32 v11, v1, v4
          v_add_u32 v11, {8*1280-1024}, v11
          v_add_u32 v12, {2*(8*1280-1024)}, v10
          v_add_u32 v13, {2*(8*1280-1024)}, v11""")
    a(f"""s_lshl_b32 s28, s22, 4
          v_add_u32 v1, s28, v3
          v_mul_u32_u24 v1, 3840, v1
          s_mul_i32 s29, s21, 80
          v_add_u32 v1, s29, v1
          v_and_b32 v2, 15, v0""")
    for half in range(2):
        a(f"""v_lshlrev_b32 v4, 1, v3
              v_or_b32 v4, {8*half}, v4
              v_xor_b32 v4, v2, v4
              v_min_u32 v4, 14, v4
              v_mul_u32_u24 v5, 52, v4
              v_lshrrev_b32 v5, 8, v5
              v_mul_u32_u24 v6, {1280-80}, v5
              v_lshl_add_u32 v6, v4, 4, v6
              v_add_u32 v6, v1, v6
              v_add_u32 v{14+2*half}, {(2*half)*(4*3840-1024)}, v6
              v_add_u32 v{15+2*half}, {(2*half+1)*(4*3840-1024)}, v6""")
    if B:
        a(f"""s_lshl_b32 s28, s20, 7
              s_lshl_b32 s29, s22, 2
              s_add_u32 s28, s28, s29
              s_sub_u32 s28, s28, 16
              v_lshrrev_b32 v1, 3, v0
              v_add_u32 v1, s28, v1
              v_max_i32 v1, 0, v1
              v_mul_u32_u24 v1, 1280, v1
              s_lshl_b32 s29, s22, 1
              v_add_u32 v4, s29, v3
              v_and_b32 v4, 7, v4
              v_and_b32 v2, 7, v0
              v_xor_b32 v2, v2, v4
              v_lshl_add_u32 v18, v2, 4, v1""")
    a("""s_mov_b32 s24, 0
         s_mov_b32 s25, 0
         s_lshl_b32 s26, s22, 12
         s_lshl_b32 s27, s22, 9
         s_mov_b32 s31, 0""")
    def issue():
        a("""s_add_u32 m0, s31, s26
             s_nop 0""")
        for i in range(4):
            a(f"buffer_load_dwordx4 v{10+i}, s[4:7], s24 offen offset:{1024*i} lds")
        a(f"""s_add_u32 m0, m0, {G1_W_OFF}
              s_nop 0""")
        for i in range(4):
            a(f"buffer_load_dwordx4 v{14+i}, s[8:11], s25 offen offset:{1024*i} lds")
        if B:
            a(f"""s_add_u32 s28, s31, s27
                  s_add_u32 m0, s28, {G1_H_OFF}
                  s_mov_b32 exec_hi, 0
                  buffer_load_dwordx4 v18, s[4:7], s24 offen lds
                  s_mov_b32 exec_hi, -1""")
        a(f"""s_add_u32 s24, s24, 128
              s_add_u32 s25, s25, {64*3840}
              s_add_u32 s31, s31, {SLOT}
              s_cmp_eq_u32 s31, {4*SLOT}
              s_cselect_b32 s31, 0, s31""")
    a("s_mov_b32 s23, 0")
    a.lab(f"L_{P}_ld_pro")
    issue()
    a(f"""s_add_u32 s23, s23, 1
          s_cmp_lt_u32 s23, 3
          s_cbranch_scc1 L_{P}_ld_pro
          s_waitcnt vmcnt({2*NL})
          s_barrier
          s_mov_b32 s23, 0""")
    a.lab(f"L_{P}_ld_loop")
    a(f"""s_waitcnt vmcnt({NL})
          s_barrier""")
    issue()
    a(f"""s_add_u32 s23, s23, 1
          s_cmp_lt_u32 s23, 7
          s_cbranch_scc1 L_{P}_ld_loop
          s_waitcnt vmcnt({NL})
          s_barrier
          s_waitcnt vmcnt(0)
          s_barrier
          s_barrier
          s_endpgm""")
    return vmax

def stats_quad_consts(a, tile, vg, t0, t1):
    a(f"""v_add_u32 v{t1}, {4*tile}, v{vg}
          v_mul_u32_u24 v{t0}, 52, v{t1}
          v_lshrrev_b32 v{t0}, 8, v{t0}
          v_mad_i32_i24 v{t1}, v{t0}, -5, v{t1}""")

def gemm1_compute(a, B, P, w, SLOT, STAT, CS):
    wm, wn = w >> 1, w & 1
    R = Regs(1)
    vn, vg = R.get(), R.get()
    t = [R.get() for _ in range(8)]
    xb = [R.get() for _ in range(2)]; wb = [R.get() for _ in range(4)]
    xa = [R.get() for _ in range(2)]; wa = [R.get() for _ in range(4)]
    acc = [[R.get(4, 4) for F in range(4)] for T in range(4)]
    hacc = [R.get(4, 4) for _ in range(2)]
    xf = [[R.get(4, 4) for T in range(4)] for b in range(2)]
    wf = [[R.get(4, 4) for F in range(4)] for b in range(2)]
    hf = [R.get(4, 4) for b in range(2)] if B else [R.get(4, 4)] * 2
    sm = [R.get() for _ in range(3)]; sq = [R.get() for _ in range(3)]
    vones = R.get()
    st0 = [R.get() for _ in range(4)]; st1 = [R.get() for _ in range(4)]; qs = [R.get() for _ in range(4)]
    tiles = [4 * wn + F for F in range(4)]
    isV = [(not B) and tl >= 5 for tl in tiles]
    statT = [2 * wn, 2 * wn + 1]
    haloF = [2 * wm, 2 * wm + 1]
    a(f"""v_and_b32 v{vn}, 15, v0
          v_lshrrev_b32 v{vg}, 4, v0
          v_lshrrev_b32 v{t[0]}, 1, v{vn}
          v_xor_b32 v{t[0]}, v{t[0]}, v{vg}
          v_lshlrev_b32 v{t[0]}, 4, v{t[0]}
          v_lshl_add_u32 v{xb[0]}, v{vn}, 7, v{t[0]}
          v_xor_b32 v{xb[1]}, 64, v{xb[0]}
          v_lshrrev_b32 v{t[1]}, 2, v{vn}
          v_lshl_add_u32 v{t[2]}, v{vg}, 3, v{t[1]}
          v_lshlrev_b32 v{t[2]}, 8, v{t[2]}
          v_and_b32 v{t[3]}, 1, v{vg}
          v_lshl_or_b32 v{t[1]}, v{t[3]}, 2, v{t[1]}
          v_and_b32 v{t[3]}, 3, v{vn}
          v_lshl_add_u32 v{t[2]}, v{t[3]}, 3, v{t[2]}
          v_add_u32 v{t[2]}, {G1_W_OFF}, v{t[2]}""")
    for F in range(4):
        a(f"""v_xor_b32 v{t[3]}, {tiles[F]}, v{t[1]}
              v_lshl_add_u32 v{wb[F]}, v{t[3]}, 5, v{t[2]}""")
    for T in range(4):
        for F in range(4):
            for r in range(4):
                a(f"v_mov_b32 v{acc[T][F]+r}, 0")
    for i in range(2):
        for r in range(4):
            a(f"v_mov_b32 v{hacc[i]+r}, 0")
            a(f"v_mov_b32 v{hf[i]+r}, {ONES_BF16}")
    for i in range(3):
        a(f"v_mov_b32 v{sm[i]}, 0")
        a(f"v_mov_b32 v{sq[i]}, 0")
    a(f"v_mov_b32 v{vones}, {ONES_BF16}")
    a("s_mov_b32 s34, 0xfffefffe")
    a("s_mov_b32 s35, 0xfffefffe")
    if not B:
        a(f"""s_mul_i32 s28, s21, {HEADREC}
              s_lshl_b32 s29, s20, 2
              s_add_u32 s29, s29, {2*wm}
              s_mul_i32 s29, s29, 2560
              s_add_u32 s30, s28, s29
              s_add_u32 s33, s28, {KVI_REL}
              v_lshrrev_b32 v{t[4]}, 3, v{vn}
              v_and_b32 v{t[5]}, 7, v{vn}
              v_lshl_or_b32 v{t[4]}, v{t[4]}, 4, v{t[5]}""")
        for F in range(4):
            if not isV[F]:
                stats_quad_consts(a, tiles[F], vg, t[0], t[1])
                a(f"""v_and_b32 v{t[2]}, 1, v{t[0]}
                      v_lshrrev_b32 v{t[3]}, 1, v{t[0]}
                      v_mul_u32_u24 v{t[5]}, {HEADREC-1280}, v{t[2]}
                      v_add_u32 v{t[5]}, s33, v{t[5]}
                      v_mul_lo_u32 v{t[5]}, v{t[5]}, v{t[3]}
                      v_mul_u32_u24 v{t[2]}, 1280, v{t[2]}
                      v_add3_u32 v{t[5]}, v{t[5]}, v{t[2]}, s30
                      v_cmp_eq_u32 vcc, 0, v{t[3]}
                      v_mov_b32 v{t[6]}, {f32(QSCALE)}
                      s_nop 0
                      v_cndmask_b32 v{qs[F]}, 1.0, v{t[6]}, vcc
                      v_lshrrev_b32 v{t[2]}, 1, v{t[1]}
                      v_lshlrev_b32 v{t[2]}, 9, v{t[2]}
                      v_and_b32 v{t[3]}, 1, v{t[1]}
                      v_lshl_add_u32 v{t[2]}, v{t[3]}, 3, v{t[2]}
                      v_cmp_eq_u32 vcc, 4, v{t[1]}
                      v_add_u32 v{t[5]}, v{t[5]}, v{t[2]}
                      s_nop 0
                      v_cndmask_b32 v{t[3]}, 4, 3, vcc
                      v_lshlrev_b32 v{t[2]}, v{t[3]}, v{t[4]}
                      v_add_u32 v{st0[F]}, v{t[5]}, v{t[2]}
                      v_lshlrev_b32 v{t[2]}, v{t[3]}, 8
                      v_add_u32 v{st1[F]}, v{st0[F]}, v{t[2]}""")
            else:
                a(f"""v_add_u32 v{t[0]}, {16*(tiles[F]-5)}, v{vn}
                      v_cmp_le_u32 vcc, 20, v{t[0]}
                      v_mov_b32 v{t[2]}, {HEADREC-320}
                      s_nop 0
                      v_cndmask_b32 v{t[1]}, 0, v{t[2]}, vcc
                      v_lshl_add_u32 v{t[1]}, v{t[0]}, 4, v{t[1]}
                      v_mul_u32_u24 v{t[2]}, 320, v{vg}
                      v_add3_u32 v{t[1]}, v{t[1]}, v{t[2]}, s33
                      v_add_u32 v{t[1]}, s30, v{t[1]}
                      v_add_u32 v{t[1]}, 1280, v{t[1]}
                      v_cmp_le_u32 vcc, 40, v{t[0]}
                      v_mov_b32 v{t[2]}, 0x7fff0000
                      s_nop 0
                      v_cndmask_b32 v{st0[F]}, v{t[1]}, v{t[2]}, vcc""")
    else:
        for F in range(4):
            stats_quad_consts(a, tiles[F], vg, t[0], t[1])
            if tiles[F] < 5:
                a(f"""v_mul_u32_u24 v{t[2]}, 48, v{t[0]}
                      v_lshl_add_u32 v{t[2]}, v{t[1]}, 3, v{t[2]}
                      v_cmp_gt_u32 vcc, 2, v{t[0]}
                      v_mov_b32 v{t[6]}, {f32(QSCALE)}
                      s_nop 0
                      v_cndmask_b32 v{qs[F]}, 1.0, v{t[6]}, vcc""")
            else:
                a(f"""v_mul_u32_u24 v{t[2]}, 80, v{t[0]}
                      v_lshl_add_u32 v{t[2]}, v{t[1]}, 4, v{t[2]}
                      v_subrev_u32 v{t[2]}, {4*80-192}, v{t[2]}
                      v_min_u32 v{t[2]}, 352, v{t[2]}""")
            a(f"""v_mul_u32_u24 v{t[3]}, {BROW}, v{vn}
                  v_add_u32 v{st0[F]}, v{t[2]}, v{t[3]}""")
    def reads(buf, ks):
        r = []
        for T in range(4):
            r.append(f"ds_read_b128 {v(xf[buf][T],4)}, v{xa[ks]} offset:{(64*wm+16*T)*128}")
        if B:
            r.append(f"s_mov_b64 exec, s[34:35]\nds_read_b128 {v(hf[buf],4)}, v{xa[ks]} offset:{G1_H_OFF}\ns_mov_b64 exec, -1")
        for F in range(4):
            for h in range(2):
                r.append(f"ds_read_b64_tr_b16 {v(wf[buf][F]+2*h,2)}, v{wa[F]} offset:{ks*8192+h*1024}")
        if B:
            order = [0, 5, 6, 7, 8, 9, 10, 11, 12, 1, 2, 3, 4]
        else:
            order = [0, 4, 5, 6, 7, 8, 9, 10, 11, 1, 2, 3]
        return [r[i] for i in order]
    def mfmas(buf):
        m = []
        for T in range(4):
            for F in range(4):
                x, ww, c = v(xf[buf][T], 4), v(wf[buf][F], 4), v(acc[T][F], 4)
                m.append(f"v_mfma_f32_16x16x32_bf16 {c}, {x}, {ww}, {c}" if isV[F] else
                         f"v_mfma_f32_16x16x32_bf16 {c}, {ww}, {x}, {c}")
        for i in range(2):
            c = v(hacc[i], 4)
            m.append(f"v_mfma_f32_16x16x32_bf16 {c}, {v(wf[buf][haloF[i]],4)}, {v(hf[buf],4)}, {c}")
        return m
    def dots(buf):
        d = []
        srcs = [xf[buf][T] for T in statT] + ([hf[buf]] if B else [])
        for r in range(4):
            for i, s_ in enumerate(srcs):
                d.append(f"v_dot2c_f32_bf16 v{sm[i]}, v{s_+r}, v{vones}")
                d.append(f"v_dot2c_f32_bf16 v{sq[i]}, v{s_+r}, v{s_+r}")
        return d
    def phase(buf, rd):
        m = mfmas(buf)
        d = dots(buf)
        out = []
        nd = len(d)
        j = 0
        for i, mm in enumerate(m):
            out.append(mm)
            if i < len(rd):
                out.append(rd[i])
            tgt = (nd * (i + 1) + len(m) - 1) // len(m)
            while j < tgt:
                out.append(d[j]); j += 1
        for x in out:
            a(x)
    a(f"v_mov_b32 v{xa[0]}, v{xb[0]}")
    a(f"v_mov_b32 v{xa[1]}, v{xb[1]}")
    for F in range(4):
        a(f"v_mov_b32 v{wa[F]}, v{wb[F]}")
    a("s_mov_b32 s23, 0")
    a("s_mov_b32 s27, 0")
    a("s_barrier")
    for x in reads(0, 0):
        a(x)
    a.raw(".p2align 4")
    a.lab(f"L_{P}_loop{w}")
    a("s_barrier")
    a(f"""s_add_u32 s27, s27, {SLOT}
          s_cmp_eq_u32 s27, {4*SLOT}
          s_cselect_b32 s27, 0, s27
          s_waitcnt lgkmcnt(0)""")
    phase(0, reads(1, 1))
    a(f"v_add_u32 v{xa[0]}, s27, v{xb[0]}")
    for F in range(4):
        a(f"v_add_u32 v{wa[F]}, s27, v{wb[F]}")
    a(f"v_add_u32 v{xa[1]}, s27, v{xb[1]}")
    a("s_waitcnt lgkmcnt(0)")
    phase(1, reads(0, 0))
    a(f"""s_add_u32 s23, s23, 1
          s_cmp_lt_u32 s23, 10
          s_cbranch_scc1 L_{P}_loop{w}""")
    a("s_waitcnt lgkmcnt(0)")
    ns = 3 if (B and w == 0) else 2
    vals = sm[:ns] + sq[:ns]
    tmp = [xf[0][0] + i for i in range(4)] + [xf[0][1] + i for i in range(4)]
    a("s_nop 2")
    for op in ("v_permlane32_swap_b32", "v_permlane16_swap_b32"):
        for i, x in enumerate(vals):
            a(f"v_mov_b32 v{tmp[i]}, v{x}")
        a("s_nop 1")
        for i, x in enumerate(vals):
            a(f"{op} v{x}, v{tmp[i]}")
        a("s_nop 1")
        for i, x in enumerate(vals):
            a(f"v_add_f32 v{x}, v{x}, v{tmp[i]}")
    mr = [xf[0][2], xf[0][2] + 2, xf[0][3]]
    a(f"s_mov_b32 s28, {STAT}")
    a(f"v_lshl_add_u32 v{t[0]}, v{vn}, 3, s28")
    STAT, CS = 0, CS - STAT
    for i in range(ns):
        a(f"""v_mul_f32 v{mr[i]}, {f32(1.0/D)}, v{sm[i]}
              v_mul_f32 v{sq[i]}, {f32(1.0/D)}, v{sq[i]}
              v_fma_f32 v{sq[i]}, -v{mr[i]}, v{mr[i]}, v{sq[i]}
              v_max_f32 v{sq[i]}, 0, v{sq[i]}
              v_add_f32 v{sq[i]}, {f32(1e-5)}, v{sq[i]}
              v_rsq_f32 v{mr[i]+1}, v{sq[i]}""")
    a("s_nop 0")
    for i in range(ns):
        row = 16 + 64 * wm + 16 * statT[i] if i < 2 else 0
        a(f"ds_write_b64 v{t[0]}, {v(mr[i],2)} offset:{STAT + row*8}")
    a(f"v_lshl_add_u32 v{t[1]}, v{vg}, 4, s28")
    a("s_not_b64 exec, s[34:35]")
    for i in range(2):
        a(f"ds_write_b128 v{t[1]}, {v(hacc[i],4)} offset:{CS + tiles[haloF[i]]*64}")
    a("s_mov_b64 exec, -1")
    a("s_waitcnt lgkmcnt(0)")
    a("s_barrier")
    tm = [wf[0][0] + 2 * T for T in range(4)]
    csq = [wf[1][F] for F in range(4)]
    vm = [[xf[0][T], xf[1][T]] for T in range(4)]
    hm = wf[0][2]
    for T in range(4):
        a(f"ds_read_b64 {v(tm[T],2)}, v{t[0]} offset:{STAT + (16+64*wm+16*T)*8}")
    if B:
        a(f"ds_read_b64 {v(hm,2)}, v{t[0]} offset:{STAT}")
    a(f"v_lshl_add_u32 v{t[2]}, v{vn}, 2, s28")
    a(f"v_lshl_add_u32 v{t[3]}, v{vg}, 5, s28")
    for F in range(4):
        if isV[F]:
            a(f"ds_read_b32 v{csq[F]}, v{t[2]} offset:{CS + tiles[F]*64}")
        else:
            a(f"ds_read_b128 {v(csq[F],4)}, v{t[1]} offset:{CS + tiles[F]*64}")
    if any(isV):
        for T in range(4):
            for h in range(2):
                a(f"ds_read_b128 {v(vm[T][h],4)}, v{t[3]} offset:{STAT + (16+64*wm+16*T)*8 + 16*h}")
    a("s_waitcnt lgkmcnt(0)")
    def norm_tok(c, F, m, scale):
        if scale:
            a(f"v_mul_f32 v{t[4]}, v{m+1}, v{qs[F]}")
        rr = t[4] if scale else m + 1
        for r in range(4):
            a(f"v_fma_f32 v{c+r}, -v{m}, v{csq[F]+r}, v{c+r}")
        for r in range(4):
            a(f"v_mul_f32 v{c+r}, v{c+r}, v{rr}")
    if not B:
        for F in range(4):
            if not isV[F]:
                for T in range(4):
                    c = acc[T][F]
                    norm_tok(c, F, tm[T], tiles[F] <= 2)
                    a(f"v_cvt_pk_bf16_f32 v{c}, v{c}, v{c+1}")
                    a(f"v_cvt_pk_bf16_f32 v{c+1}, v{c+2}, v{c+3}")
                    a(f"buffer_store_dwordx2 {v(c,2)}, v{(st0,st1)[T&1][F]}, s[12:15], 0 offen offset:{2560*(T>>1)}")
            else:
                for u in range(2):
                    for T in (2 * u, 2 * u + 1):
                        c = acc[T][F]
                        for r in range(4):
                            m = vm[T][r >> 1] + 2 * (r & 1)
                            a(f"v_fma_f32 v{c+r}, -v{m}, v{csq[F]}, v{c+r}")
                        for r in range(4):
                            m = vm[T][r >> 1] + 2 * (r & 1)
                            a(f"v_mul_f32 v{c+r}, v{c+r}, v{m+1}")
                    c0, c1 = acc[2 * u][F], acc[2 * u + 1][F]
                    a(f"""v_cvt_pk_bf16_f32 v{c0}, v{c0}, v{c0+1}
                          v_cvt_pk_bf16_f32 v{c0+1}, v{c0+2}, v{c0+3}
                          v_cvt_pk_bf16_f32 v{c0+2}, v{c1}, v{c1+1}
                          v_cvt_pk_bf16_f32 v{c0+3}, v{c1+2}, v{c1+3}
                          buffer_store_dwordx4 {v(c0,4)}, v{st0[F]}, s[12:15], 0 offen offset:{2560*u}""")
        a("s_endpgm")
        return R.n
    def dump(c, F, m, row):
        norm_tok(c, F, m, tiles[F] <= 2)
        if tiles[F] < 5:
            a(f"v_cvt_pk_bf16_f32 v{c}, v{c}, v{c+1}")
            a(f"v_cvt_pk_bf16_f32 v{c+1}, v{c+2}, v{c+3}")
            a(f"ds_write_b64 v{st0[F]}, {v(c,2)} offset:{row*BROW}")
        else:
            a(f"ds_write_b128 v{st0[F]}, {v(c,4)} offset:{row*BROW}")
    for F in range(4):
        for T in range(4):
            dump(acc[T][F], F, tm[T], 16 + 64 * wm + 16 * T)
    for i in range(2):
        dump(hacc[i], haloF[i], hm, 0)
    a("s_waitcnt lgkmcnt(0)")
    a("s_barrier")
    local_attn(a, w, t, acc[0][0])
    return R.n

def local_attn(a, w, t, base):
    hs, tb = w >> 1, 64 * (w & 1)
    q = base; k = [base + 12, base + 24]; lg = base + 36; o = base + 44; vv = [base + 64, base + 84]
    va, vs, vo = t[0], t[1], t[2]
    a(f"""v_mul_u32_u24 v{va}, {BROW}, v0
          s_lshl_b32 s28, s20, 7
          s_add_u32 s28, s28, {tb}
          v_add_u32 v{vs}, s28, v0
          v_mul_u32_u24 v{vo}, 1280, v{vs}
          s_mul_i32 s29, s21, 80
          s_add_u32 s29, s29, {40*hs}""")
    r0 = 2 + tb
    def rd3(dst, off):
        a(f"ds_read_b128 {v(dst,4)}, v{va} offset:{off}")
        a(f"ds_read_b128 {v(dst+4,4)}, v{va} offset:{off+16}")
        a(f"ds_read_b64 {v(dst+8,2)}, v{va} offset:{off+32}")
    def rowoff(wi): return (r0 + 14 - 2 * wi) * BROW
    rd3(q, rowoff(0) + 48 * hs)
    rd3(k[0], rowoff(0) + 96 + 48 * hs)
    for wi in range(8):
        if wi < 7:
            rd3(k[(wi + 1) & 1], rowoff(wi + 1) + 96 + 48 * hs)
            a("s_waitcnt lgkmcnt(3)")
        else:
            a("s_waitcnt lgkmcnt(0)")
        a(f"v_mov_b32 v{lg+wi}, 0")
        for j in range(10):
            a(f"v_dot2c_f32_bf16 v{lg+wi}, v{q+j}, v{k[wi&1]+j}")
    def rdv(dst, wi):
        for j in range(5):
            a(f"ds_read_b128 {v(dst+4*j,4)}, v{va} offset:{rowoff(wi) + 192 + 80*hs + 16*j}")
    rdv(vv[0], 0)
    a(f"v_mov_b32 v{t[3]}, {f32(-1e9 * math.log2(math.e))}")
    a("s_nop 1")
    for wi in range(1, 8):
        a(f"v_cmp_le_u32 vcc, {2*wi}, v{vs}")
        a("s_nop 1")
        a(f"v_cndmask_b32 v{lg+wi}, v{t[3]}, v{lg+wi}, vcc")
    a(f"""v_max3_f32 v{t[4]}, v{lg}, v{lg+1}, v{lg+2}
          v_max3_f32 v{t[4]}, v{t[4]}, v{lg+3}, v{lg+4}
          v_max3_f32 v{t[4]}, v{t[4]}, v{lg+5}, v{lg+6}
          v_max_f32 v{t[4]}, v{t[4]}, v{lg+7}""")
    for wi in range(8):
        a(f"v_sub_f32 v{lg+wi}, v{lg+wi}, v{t[4]}")
    for wi in range(8):
        a(f"v_exp_f32 v{lg+wi}, v{lg+wi}")
    a("s_nop 0")
    a(f"v_add_f32 v{t[4]}, v{lg}, v{lg+1}")
    for wi in range(2, 8):
        a(f"v_add_f32 v{t[4]}, v{t[4]}, v{lg+wi}")
    a(f"v_rcp_f32 v{t[4]}, v{t[4]}")
    a("s_nop 0")
    for wi in range(8):
        a(f"v_mul_f32 v{lg+wi}, v{lg+wi}, v{t[4]}")
    for wi in range(8):
        if wi < 7:
            rdv(vv[(wi + 1) & 1], wi + 1)
            a("s_waitcnt lgkmcnt(5)")
        else:
            a("s_waitcnt lgkmcnt(0)")
        p = lg + (wi & ~1)
        sel = wi & 1
        for j in range(10):
            src = v(vv[wi & 1] + 2 * j, 2)
            if wi == 0:
                a(f"v_pk_mul_f32 {v(o+2*j,2)}, {src}, {v(p,2)} op_sel:[0,{sel}] op_sel_hi:[1,{sel}]")
            else:
                a(f"v_pk_fma_f32 {v(o+2*j,2)}, {src}, {v(p,2)}, {v(o+2*j,2)} op_sel:[0,{sel},0] op_sel_hi:[1,{sel},1]")
    for j in range(10):
        a(f"v_cvt_pk_bf16_f32 v{q+j}, v{o+2*j}, v{o+2*j+1}")
    a(f"""buffer_store_dwordx4 {v(q,4)}, v{vo}, s[12:15], s29 offen
          buffer_store_dwordx4 {v(q+4,4)}, v{vo}, s[12:15], s29 offen offset:16
          buffer_store_dwordx2 {v(q+8,2)}, v{vo}, s[12:15], s29 offen offset:32
          s_endpgm""")

G2_SLOT = 40960
G2_LDS = 4 * G2_SLOT
def gemm2(a):
    P = "g2"
    a.raw(".p2align 6")
    a.lab(f"L_{P}_body")
    a("""v_lshrrev_b32 v1, 6, v0
         s_and_b32 s28, s2, 7
         s_lshr_b32 s29, s2, 3
         v_readfirstlane_b32 s22, v1
         v_and_b32 v0, 63, v0
         s_lshr_b32 s20, s28, 1
         s_lshl_b32 s20, s20, 3
         s_and_b32 s30, s29, 7
         s_add_u32 s20, s20, s30
         s_and_b32 s21, s28, 1
         s_lshl_b32 s21, s21, 2
         s_lshr_b32 s30, s29, 3
         s_add_u32 s21, s21, s30""")
    a("s_cmp_ge_u32 s22, 4")
    a(f"s_cbranch_scc1 L_{P}_loader")
    R = Regs(1)
    vn, vg = R.get(), R.get()
    t = [R.get() for _ in range(4)]
    ob = [R.get() for _ in range(4)]; wb = R.get()
    oa = [R.get() for _ in range(4)]; wa = R.get()
    vres = R.get()
    acc = [R.get(4, 4) for F in range(5)]
    of = [R.get(4, 4) for b in range(2)]
    wf = [[R.get(4, 4) for F in range(5)] for b in range(2)]
    res = [R.get(2) for F in range(5)]
    a(f"""v_and_b32 v{vn}, 15, v0
          v_lshrrev_b32 v{vg}, 4, v0
          s_lshl_b32 s28, s20, 6
          s_lshl_b32 s29, s22, 4
          s_add_u32 s28, s28, s29
          v_add_u32 v{t[0]}, s28, v{vn}
          v_mul_u32_u24 v{t[0]}, 1280, v{t[0]}
          v_lshl_add_u32 v{vres}, v{vg}, 3, v{t[0]}
          s_mul_i32 s33, s21, 160""")
    for F in range(5):
        a(f"buffer_load_dwordx2 {v(res[F],2)}, v{vres}, s[12:15], s33 offen offset:{32*F}")
    a(f"""v_add_u32 v{t[0]}, s29, v{vn}
          v_xor_b32 v{t[1]}, v{vg}, v{vn}
          v_lshlrev_b32 v{t[1]}, 4, v{t[1]}
          v_lshl_add_u32 v{ob[0]}, v{t[0]}, 8, v{t[1]}
          v_xor_b32 v{ob[1]}, 64, v{ob[0]}
          v_xor_b32 v{ob[2]}, 128, v{ob[0]}
          v_xor_b32 v{ob[3]}, 192, v{ob[0]}
          v_mul_u32_u24 v{t[0]}, 1408, v{vg}
          v_lshrrev_b32 v{t[1]}, 2, v{vn}
          v_mul_u32_u24 v{t[1]}, 160, v{t[1]}
          v_and_b32 v{t[2]}, 3, v{vn}
          v_lshl_add_u32 v{t[1]}, v{t[2]}, 3, v{t[1]}
          v_add3_u32 v{wb}, v{t[0]}, v{t[1]}, 0
          v_add_u32 v{wb}, 16384, v{wb}""")
    for F in range(5):
        for r in range(4):
            a(f"v_mov_b32 v{acc[F]+r}, 0")
    for i in range(4):
        a(f"v_mov_b32 v{oa[i]}, v{ob[i]}")
    a(f"v_mov_b32 v{wa}, v{wb}")
    def reads(buf, ks):
        r = [f"ds_read_b128 {v(of[buf],4)}, v{oa[ks]}"]
        for F in range(5):
            for h in range(2):
                r.append(f"ds_read_b64_tr_b16 {v(wf[buf][F]+2*h,2)}, v{wa} offset:{ks*5632+h*640+32*F}")
        return r
    def phase(buf, rd):
        m = [f"v_mfma_f32_16x16x32_bf16 {v(acc[F],4)}, {v(wf[buf][F],4)}, {v(of[buf],4)}, {v(acc[F],4)}" for F in range(5)]
        for x in rd[:3]:
            a(x)
        for x in interleave(m, rd[3:]):
            a(x)
    a("s_mov_b32 s23, 0")
    a("s_mov_b32 s27, 0")
    a.lab(f"L_{P}_loop")
    a("s_barrier")
    for x in reads(0, 0):
        a(x)
    a(f"""s_add_u32 s27, s27, {G2_SLOT}
          s_cmp_eq_u32 s27, {4*G2_SLOT}
          s_cselect_b32 s27, 0, s27""")
    for ks in range(4):
        a("s_waitcnt lgkmcnt(0)")
        phase(ks & 1, reads((ks + 1) & 1, ks + 1) if ks < 3 else [])
    for i in range(4):
        a(f"v_add_u32 v{oa[i]}, s27, v{ob[i]}")
    a(f"v_add_u32 v{wa}, s27, v{wb}")
    a(f"""s_add_u32 s23, s23, 1
          s_cmp_lt_u32 s23, 5
          s_cbranch_scc1 L_{P}_loop
          s_waitcnt vmcnt(0)
          s_nop 2""")
    for F in range(5):
        c = acc[F]
        for j in range(2):
            a(f"""v_lshlrev_b32 v{t[0]}, 16, v{res[F]+j}
                  v_and_b32 v{t[1]}, 0xffff0000, v{res[F]+j}
                  v_add_f32 v{c+2*j}, v{c+2*j}, v{t[0]}
                  v_add_f32 v{c+2*j+1}, v{c+2*j+1}, v{t[1]}""")
        a(f"""v_cvt_pk_bf16_f32 v{c}, v{c}, v{c+1}
              v_cvt_pk_bf16_f32 v{c+1}, v{c+2}, v{c+3}
              buffer_store_dwordx2 {v(c,2)}, v{vres}, s[16:19], s33 offen offset:{32*F}""")
    a("s_endpgm")
    a.lab(f"L_{P}_loader")
    a("s_sub_u32 s22, s22, 4")
    a(f"""v_lshrrev_b32 v3, 4, v0
          v_and_b32 v2, 15, v0
          s_lshl_b32 s28, s20, 6
          s_lshl_b32 s29, s22, 4
          s_add_u32 s28, s28, s29
          v_add_u32 v1, s28, v3
          v_mul_u32_u24 v1, 1280, v1""")
    for i in range(4):
        a(f"""v_add_u32 v4, {4*i}, v3
              v_xor_b32 v4, v4, v2
              v_lshl_add_u32 v4, v4, 4, v1
              v_add_u32 v{10+i}, {i*(4*1280-1024)}, v4""")
    a(f"""s_mul_i32 s28, s22, 384
          s_mul_i32 s29, s21, 160
          v_mov_b32 v7, 0x7fff0000""")
    for u in range(6):
        a(f"""v_add_u32 v1, s28, v0
              v_add_u32 v1, {64*u}, v1
              v_mul_u32_u24 v2, 2979, v1
              v_lshrrev_b32 v2, 18, v2
              v_mul_u32_u24 v3, 88, v2
              v_sub_u32 v3, v1, v3
              v_mul_u32_u24 v4, 205, v3
              v_lshrrev_b32 v4, 11, v4
              v_mad_i32_i24 v5, v4, -10, v3
              v_lshl_add_u32 v4, v2, 3, v4
              v_mul_u32_u24 v4, 1280, v4
              v_lshl_add_u32 v4, v5, 4, v4
              v_add_u32 v4, s29, v4
              v_cmp_le_u32 vcc, 80, v3
              v_cmp_le_u32 s[36:37], 16, v2
              s_nop 1
              s_or_b64 vcc, vcc, s[36:37]
              s_nop 1
              v_cndmask_b32 v{14+u}, v4, v7, vcc""")
    a("""s_mov_b32 s24, 0
         s_mov_b32 s25, 0
         s_lshl_b32 s26, s22, 12
         s_mul_i32 s27, s22, 6144
         s_add_u32 s27, s27, 16384""")
    def issue(slot):
        a(f"""s_add_u32 m0, s26, {slot*G2_SLOT}
              s_nop 0""")
        for i in range(4):
            a(f"buffer_load_dwordx4 v{10+i}, s[4:7], s24 offen offset:{1024*i} lds")
        for u in range(6):
            a(f"""s_add_u32 m0, s27, {slot*G2_SLOT + 1024*u}
                  s_nop 0
                  buffer_load_dwordx4 v{14+u}, s[8:11], s25 offen lds""")
        a(f"""s_add_u32 s24, s24, 256
              s_add_u32 s25, s25, {128*1280}""")
    for c in range(4):
        issue(c)
    a("""s_waitcnt vmcnt(30)
         s_barrier
         s_waitcnt vmcnt(20)
         s_barrier""")
    issue(0)
    a("""s_waitcnt vmcnt(20)
         s_barrier
         s_waitcnt vmcnt(10)
         s_barrier
         s_waitcnt vmcnt(0)
         s_barrier
         s_endpgm""")
    return max(R.n, 20)

AT_LDS = 163840
AT_U = 8
def attn(a):
    P = "at"
    a.raw(".p2align 6")
    a.lab(f"L_{P}_body")
    a("""v_lshrrev_b32 v1, 6, v0
         s_and_b32 s28, s2, 7
         s_lshr_b32 s29, s2, 3
         v_readfirstlane_b32 s22, v1
         v_and_b32 v0, 63, v0
         s_lshl_b32 s20, s28, 2
         s_and_b32 s30, s29, 3
         s_add_u32 s20, s20, s30
         s_lshr_b32 s21, s29, 2""")
    a("s_cmp_ge_u32 s22, 8")
    a(f"s_cbranch_scc1 L_{P}_loader")
    R = Regs(1)
    t = [R.get() for _ in range(6)]
    aK, aB, aV = R.get(), R.get(), R.get()
    Qa = R.get(4, 4); Qb = R.get(2)
    Sb = [R.get(16, 4) for _ in range(2)]
    O = R.get(16, 4)
    Pp = R.get(8, 4)
    Ka = [R.get(4, 4) for _ in range(2)]
    Kb = [R.get(2) for _ in range(2)]
    Vf = [R.get(8, 4) for _ in range(2)]
    vm, vo = R.get(), R.get()
    a(f"""s_lshr_b32 s28, s20, 1
          s_lshl_b32 s28, s28, 6
          s_lshl_b32 s29, s21, 3
          s_add_u32 s29, s29, s22
          s_add_u32 s28, s28, s29
          s_mul_i32 s28, s28, 2560
          s_and_b32 s30, s20, 1
          s_mul_i32 s30, s30, 1280
          s_add_u32 s28, s28, s30
          v_lshlrev_b32 v{aK}, 4, v0
          v_and_b32 v{t[0]}, 31, v0
          v_lshlrev_b32 v{aB}, 3, v{t[0]}
          v_add_u32 v{aB}, 1024, v{aB}
          v_lshrrev_b32 v{t[1]}, 5, v0
          v_lshl_add_u32 v{t[2]}, v{t[1]}, 30, v{aB}
          buffer_load_dwordx4 {v(Qa,4)}, v{aK}, s[4:7], s28 offen
          buffer_load_dwordx2 {v(Qb,2)}, v{t[2]}, s[4:7], s28 offen
          v_mul_u32_u24 v{aV}, 320, v{t[1]}
          v_lshl_add_u32 v{aV}, v{t[0]}, 4, v{aV}
          v_add_u32 v{aV}, 1280, v{aV}
          s_mov_b32 s34, 0x000fffff
          s_mov_b32 s35, 0x000fffff""")
    a(f"""v_and_b32 v{t[2]}, 7, v0
          v_and_b32 v{t[3]}, 8, v0
          v_lshl_or_b32 v{t[2]}, v{t[3]}, 1, v{t[2]}
          v_and_b32 v{t[3]}, 16, v0
          v_lshrrev_b32 v{t[3]}, 1, v{t[3]}
          v_or_b32 v{t[2]}, v{t[2]}, v{t[3]}
          s_lshl_b32 s29, s29, 5
          v_add_u32 v{t[2]}, s29, v{t[2]}
          v_mul_u32_u24 v{vo}, 1280, v{t[2]}
          v_lshl_add_u32 v{vo}, v{t[1]}, 4, v{vo}
          s_mul_i32 s33, s20, 40""")
    for r in range(16):
        a(f"v_mov_b32 v{O+r}, 0")
    for r in range(8):
        a(f"v_mov_b32 v{Pp+r}, 0")
        a(f"v_mov_b32 v{Vf[0]+r}, {ONES_BF16}")
        a(f"v_mov_b32 v{Vf[1]+r}, {ONES_BF16}")
    def rdK(b, off):
        return [f"ds_read_b128 {v(Ka[b],4)}, v{aK} offset:{off}", f"ds_read_b64 {v(Kb[b],2)}, v{aB} offset:{off}"]
    def rdV(b, off):
        return ["s_mov_b64 exec, s[34:35]",
                f"ds_read_b128 {v(Vf[b],4)}, v{aV} offset:{off}",
                f"ds_read_b128 {v(Vf[b]+4,4)}, v{aV} offset:{off+640}",
                "s_mov_b64 exec, -1"]
    def mS1(sb, kb): return f"v_mfma_f32_32x32x16_bf16 {v(Sb[sb],16)}, {v(Ka[kb],4)}, {v(Qa,4)}, 0"
    def mS2(sb, kb): return f"v_mfma_f32_32x32x8_bf16 {v(Sb[sb],16)}, {v(Kb[kb],2)}, {v(Qb,2)}, {v(Sb[sb],16)}"
    def mPV(vb, j): return f"v_mfma_f32_32x32x16_bf16 {v(O,16)}, {v(Vf[vb]+4*j,4)}, {v(Pp+4*j,4)}, {v(O,16)}"
    a("s_barrier")
    for x in rdK(0, 0) + rdK(1, 2560) + rdV(0, 0):
        a(x)
    a("s_waitcnt vmcnt(0) lgkmcnt(4)")
    a(mS1(0, 0)); a(mS2(0, 0))
    a("s_mov_b32 s23, 0")
    a("s_nop 7")
    a("s_nop 2")
    a.raw(".p2align 4")
    a.lab(f"L_{P}_loop")
    for u in range(AT_U):
        b = u & 1
        Sc = Sb[b]
        e = lambda i: f"v_exp_f32 v{Sc+i}, v{Sc+i}"
        c = lambda i: f"v_cvt_pk_bf16_f32 v{Pp+i}, v{Sc+2*i}, v{Sc+2*i+1}"
        seq = [e(0), e(1), mPV(1 - b, 1), e(2), e(3), c(0), c(1), "s_waitcnt lgkmcnt(0)", mS1(1 - b, 1 - b)]
        seq += rdK(b, 2560 * (u + 2))
        seq += [e(4), e(5)] + rdV(1 - b, 2560 * (u + 1)) + [e(6), e(7), c(2), c(3), mS2(1 - b, 1 - b),
                e(8), e(9), e(10), e(11), c(4), c(5), mPV(b, 0), e(12), e(13), e(14), e(15), c(6), c(7)]
        for x in seq:
            a(x)
    a(f"""v_add_u32 v{aK}, {2560*AT_U}, v{aK}
          v_add_u32 v{aB}, {2560*AT_U}, v{aB}
          v_add_u32 v{aV}, {2560*AT_U}, v{aV}
          s_cmp_lg_u32 s23, 0
          s_cbranch_scc1 L_{P}_nobar
          s_barrier""")
    a.lab(f"L_{P}_nobar")
    a(f"""s_add_u32 s23, s23, 1
          s_cmp_lt_u32 s23, {64//AT_U}
          s_cbranch_scc1 L_{P}_loop""")
    a(mPV(1, 1))
    a("s_waitcnt lgkmcnt(0)")
    a("s_nop 7")
    a("s_nop 3")
    def finish():
        a(f"""v_mov_b32 v{t[0]}, v{O+8}
              v_mov_b32 v{t[1]}, v{O+8}
              s_nop 1
              v_permlane32_swap_b32 v{t[0]}, v{t[1]}""")
    finish()
    a(f"""v_mov_b32 v{t[2]}, {f32(2.0**-64)}
          v_mov_b32 v{t[3]}, {f32(2.0**64)}
          v_cmp_ge_f32 vcc, v{t[1]}, v{t[2]}
          v_cmp_le_f32 s[36:37], v{t[1]}, v{t[3]}
          s_nop 3
          s_and_b64 vcc, vcc, s[36:37]
          s_cmp_eq_u64 vcc, -1
          s_cbranch_scc0 L_{P}_slow""")
    a.lab(f"L_{P}_store")
    a(f"v_rcp_f32 v{t[1]}, v{t[1]}")
    a("s_nop 0")
    for r in range(12):
        a(f"v_mul_f32 v{O+r}, v{O+r}, v{t[1]}")
    for j in range(6):
        a(f"v_cvt_pk_bf16_f32 v{Pp+j}, v{O+2*j}, v{O+2*j+1}")
    a(f"""s_nop 1
          v_permlane32_swap_b32 v{Pp}, v{Pp+2}
          v_permlane32_swap_b32 v{Pp+1}, v{Pp+3}
          buffer_store_dwordx4 {v(Pp,4)}, v{vo}, s[8:11], s33 offen
          s_mov_b32 exec_hi, 0
          buffer_store_dwordx2 {v(Pp+4,2)}, v{vo}, s[8:11], s33 offen offset:32
          s_endpgm""")
    a.lab(f"L_{P}_slow")
    a(f"""v_subrev_u32 v{aK}, {2560*64}, v{aK}
          v_subrev_u32 v{aB}, {2560*64}, v{aB}
          v_subrev_u32 v{aV}, {2560*64}, v{aV}
          v_mov_b32 v{vm}, {f32(-3.0e38)}
          s_mov_b32 s23, 0""")
    for r in range(16):
        a(f"v_mov_b32 v{O+r}, 0")
    a.lab(f"L_{P}_slow_loop")
    for x in rdK(0, 0) + rdV(0, 0):
        a(x)
    a("s_waitcnt lgkmcnt(0)")
    a(mS1(0, 0)); a(mS2(0, 0))
    a("s_nop 7")
    a("s_nop 7")
    Sc = Sb[0]
    a(f"v_max3_f32 v{t[0]}, v{Sc}, v{Sc+1}, v{vm}")
    for i in range(2, 16, 2):
        a(f"v_max3_f32 v{t[0]}, v{Sc+i}, v{Sc+i+1}, v{t[0]}")
    a(f"""v_mov_b32 v{t[1]}, v{t[0]}
          s_nop 1
          v_permlane32_swap_b32 v{t[0]}, v{t[1]}
          s_nop 1
          v_max_f32 v{t[0]}, v{t[0]}, v{t[1]}
          v_sub_f32 v{t[2]}, v{vm}, v{t[0]}
          v_exp_f32 v{t[2]}, v{t[2]}
          v_mov_b32 v{vm}, v{t[0]}""")
    for i in range(16):
        a(f"v_sub_f32 v{Sc+i}, v{Sc+i}, v{vm}")
    for i in range(16):
        a(f"v_exp_f32 v{Sc+i}, v{Sc+i}")
    for i in range(16):
        a(f"v_mul_f32 v{O+i}, v{O+i}, v{t[2]}")
    for i in range(8):
        a(f"v_cvt_pk_bf16_f32 v{Pp+i}, v{Sc+2*i}, v{Sc+2*i+1}")
    a("s_nop 1")
    a(mPV(0, 0)); a(mPV(0, 1))
    a(f"""v_add_u32 v{aK}, 2560, v{aK}
          v_add_u32 v{aB}, 2560, v{aB}
          v_add_u32 v{aV}, 2560, v{aV}
          s_nop 7
          s_nop 7
          s_add_u32 s23, s23, 1
          s_cmp_lt_u32 s23, 64
          s_cbranch_scc1 L_{P}_slow_loop""")
    finish()
    a(f"s_branch L_{P}_store")
    a.lab(f"L_{P}_loader")
    a(f"""s_sub_u32 s22, s22, 8
          s_lshl_b32 s22, s22, 10
          v_lshlrev_b32 v1, 4, v0
          s_mul_i32 s24, s20, {HEADREC}
          s_add_u32 s24, s24, {KVI_REL}
          s_add_u32 s24, s24, s22
          s_mov_b32 m0, s22
          s_mov_b32 s23, 0""")
    a.lab(f"L_{P}_ld")
    a(f"""buffer_load_dwordx4 v1, s[4:7], s24 offen lds
          s_add_u32 m0, m0, 2048
          s_add_u32 s24, s24, 2048
          s_add_u32 s23, s23, 1
          s_cmp_eq_u32 s23, 30
          s_cbranch_scc0 L_{P}_ld2
          s_waitcnt vmcnt(16)
          s_barrier""")
    a.lab(f"L_{P}_ld2")
    a(f"""s_cmp_lt_u32 s23, 80
          s_cbranch_scc1 L_{P}_ld
          s_waitcnt vmcnt(0)
          s_barrier
          s_endpgm""")
    return R.n

def build():
    a = A()
    hdr = open("cdna_kernels/" + NAME + ".s.ref").read().split("\n")
    for l in hdr:
        if l.startswith("; Override") or l.startswith("; grid=ceil") or "@launch" in l:
            continue
        if not l.startswith(";"):
            break
        a.raw(l)
    ks = []
    def L(name, block, lds):
        ks.append(name)
        a.raw(f"; @launch kernel={name} grid=(256,1,1) block=({block},1,1) lds={lds}")
    L("g1a1_kernel", 512, g1_lds(False))
    L("attn_kernel", 640, AT_LDS)
    L("g2a1_kernel", 512, G2_LDS)
    L("g1b1_kernel", 512, g1_lds(True))
    L("g2b1_kernel", 512, G2_LDS)
    L("g1a2_kernel", 512, g1_lds(False))
    L("attn_kernel", 640, AT_LDS)
    L("g2a2_kernel", 512, G2_LDS)
    L("g1b2_kernel", 512, g1_lds(True))
    L("g2b2_kernel", 512, G2_LDS)
    a.raw('.amdgcn_target "amdgcn-amd-amdhsa--gfx950"')
    a.raw(".text")
    desc = []
    qkv = (12, KA_WS, QI_OFF, QKV_BYTES)
    entry(a, "g1a1_kernel", 256, [(4, KA_X, 0, XB), (8, KA_WQKV_A, 0, WQKV_B), qkv], "L_g1a_body")
    entry(a, "g1a2_kernel", 256, [(4, KA_WS, X2_OFF, XB), (8, KA_WQKV_A, 0, WQKV_B), qkv], "L_g1a_body")
    n = gemm1(a, False)
    desc += [kdesc("g1a1_kernel", n), kdesc("g1a2_kernel", n)]
    entry(a, "attn_kernel", 256, [(4, KA_WS, QI_OFF, QKV_BYTES), (8, KA_WS, O_OFF, XB)], "L_at_body")
    n = attn(a)
    desc += [kdesc("attn_kernel", n)]
    o = (4, KA_WS, O_OFF, XB)
    entry(a, "g2a1_kernel", 256, [o, (8, KA_WO_A, 0, WO_B), (12, KA_X, 0, XB), (16, KA_WS, X1_OFF, XB)], "L_g2_body")
    entry(a, "g2b1_kernel", 256, [o, (8, KA_WO_B, 0, WO_B), (12, KA_WS, X1_OFF, XB), (16, KA_WS, X2_OFF, XB)], "L_g2_body")
    entry(a, "g2a2_kernel", 256, [o, (8, KA_WO_A, 0, WO_B), (12, KA_WS, X2_OFF, XB), (16, KA_WS, X3_OFF, XB)], "L_g2_body")
    entry(a, "g2b2_kernel", 256, [o, (8, KA_WO_B, 0, WO_B), (12, KA_WS, X3_OFF, XB), (16, KA_OUT, 0, XB)], "L_g2_body")
    n = gemm2(a)
    desc += [kdesc(k, n) for k in ("g2a1_kernel", "g2b1_kernel", "g2a2_kernel", "g2b2_kernel")]
    ob = (12, KA_WS, O_OFF, XB)
    entry(a, "g1b1_kernel", 256, [(4, KA_WS, X1_OFF, XB), (8, KA_WQKV_B, 0, WQKV_B), ob], "L_g1b_body")
    entry(a, "g1b2_kernel", 256, [(4, KA_WS, X3_OFF, XB), (8, KA_WQKV_B, 0, WQKV_B), ob], "L_g1b_body")
    n = gemm1(a, True)
    desc += [kdesc("g1b1_kernel", n), kdesc("g1b2_kernel", n)]
    a.raw('.section .rodata,"a"')
    for d in desc:
        a.raw(d.rstrip("\n"))
    return a.text()

if __name__ == "__main__":
    out = sys.argv[1] if len(sys.argv) > 1 else "cdna_kernels/" + NAME + ".s"
    open(out, "w").write(build())
    print("wrote", out)
```
